```python
import torch

def _softmax(x, axis=-1):
    return torch.softmax(x, dim=axis)
def _gelu(x):
    return torch.nn.functional.gelu(x, approximate="tanh")
def _silu(x):
    return torch.nn.functional.silu(x)
def _sigmoid(x):
    return torch.sigmoid(x)
def _layernorm(x, axis=-1, eps=1e-5):
    m = x.mean(dim=axis, keepdim=True)
    v = x.var(dim=axis, keepdim=True, unbiased=False)
    return (x - m) / torch.sqrt(v + eps)
def _scatter_add(tgt, idx, src, axis=0):
    return tgt.clone().index_add_(axis, idx, src)
def _segment_sum(src, seg, n):
    out = torch.zeros((n,) + src.shape[1:], dtype=src.dtype)
    return out.index_add_(0, seg, src)
def _pad(x, pw):
    flat = tuple(v for pair in reversed(pw) for v in pair)
    return torch.nn.functional.pad(x, flat)

kernel_name = 'interleave_layers__linear_kernel_hedgehog__dense_activation_squared_relu__prompt'

def setup_inputs():

    _w = (lambda a: (lambda t: t.to(torch.bfloat16) if t.is_floating_point() else t)(torch.as_tensor(a)))
    def _A_setup():
        B, S, D, H = 1, 2048, 576, 32
        Dh = D // H
        return {
            "x": _w((lambda *s: torch.randn(*s, dtype=torch.bfloat16) * 0.05)(B, S, D)),
            "wqkv": _w((lambda *s: torch.randn(*s, dtype=torch.bfloat16) * 0.2)(D, 3 * D)),
            "w_phi": _w((lambda *s: torch.randn(*s, dtype=torch.bfloat16) * 0.2)(H, Dh, Dh) * (Dh ** -0.5)),
            "wo": _w((lambda *s: torch.randn(*s, dtype=torch.bfloat16) * 0.1)(D, D)),
        }
    _A_in = _A_setup()

    def _B_setup():
        B, S, D, F = 1, 2048, 576, 4608
        return {
            "x": _w((lambda *s: torch.randn(*s, dtype=torch.bfloat16) * 0.05)(B, S, D)),
            "w1": _w((lambda *s: torch.randn(*s, dtype=torch.bfloat16) * 0.05)(D, F)),
            "b1": _w((lambda *s: torch.randn(*s, dtype=torch.bfloat16) * 0.2)(F)),
            "w2": _w((lambda *s: torch.randn(*s, dtype=torch.bfloat16) * 0.05)(F, D)),
            "b2": _w((lambda *s: torch.randn(*s, dtype=torch.bfloat16) * 1.6)(D)),
        }
    _B_in = _B_setup()

    return {
        "A_x": _A_in["x"],
        "A_wqkv": _A_in["wqkv"],
        "A_w_phi": _A_in["w_phi"],
        "A_wo": _A_in["wo"],
        "B_x": _B_in["x"],
        "B_w1": _B_in["w1"],
        "B_b1": _B_in["b1"],
        "B_w2": _B_in["w2"],
        "B_b2": _B_in["b2"],
    }

def reference(A_x, A_wqkv, A_w_phi, A_wo, B_x, B_w1, B_b1, B_w2, B_b2):
    def _A_ref(x, wqkv, w_phi, wo):
        B, S, D = x.shape
        H = 32; Dh = D // H
        qkv = (lambda x, *d: x.permute(*d))((x @ wqkv).reshape(B, S, 3, H, Dh), 2, 0, 3, 1, 4)
        q, k, v = qkv[0], qkv[1], qkv[2]
        pq = torch.einsum("bhsd,hdf->bhsf", q, w_phi)
        pk = torch.einsum("bhsd,hdf->bhsf", k, w_phi)
        phi_q = torch.concatenate([_softmax(pq, axis=-1), _softmax(-pq, axis=-1)], axis=-1)
        phi_k = torch.concatenate([_softmax(pk, axis=-1), _softmax(-pk, axis=-1)], axis=-1)
        kv = torch.einsum("bhsf,bhsd->bhfd", phi_k, v)
        z  = torch.einsum("bhsf->bhf", phi_k)
        num = torch.einsum("bhqf,bhfd->bhqd", phi_q, kv)
        den = torch.einsum("bhqf,bhf->bhq", phi_q, z)[..., None] + 1e-6
        o = num / den
        return (lambda x, *d: x.permute(*d))(o, 0, 2, 1, 3).reshape(B, S, D) @ wo

    def _B_ref(x, w1, b1, w2, b2):
        h = torch.einsum("bsd,df->bsf", x, w1) + b1
        zero = torch.zeros_like(h)
        r = torch.where(h > zero, h, zero)
        h = r * r
        out = torch.einsum("bsf,fd->bsd", h, w2) + b2
        return out

    x = A_x
    x = x + _A_ref(_layernorm(x, axis=-1), A_wqkv, A_w_phi, A_wo)
    x = x + _B_ref(_layernorm(x, axis=-1), B_w1, B_b1, B_w2, B_b2)
    x = x + _A_ref(_layernorm(x, axis=-1), A_wqkv, A_w_phi, A_wo)
    x = x + _B_ref(_layernorm(x, axis=-1), B_w1, B_b1, B_w2, B_b2)
    return x
```

```python
import re

TRANS = ("v_exp_f32", "v_log_f32", "v_rcp_f32", "v_rsq_f32", "v_sqrt_f32", "v_sin_f32", "v_cos_f32", "v_rcp_iflag_f32")

def parse_regs(tok):
    tok = tok.strip()
    tok = tok.lstrip('-')
    m = re.fullmatch(r"abs\((.*)\)", tok)
    if m: tok = m.group(1)
    m = re.fullmatch(r"([vas])(\d+)", tok)
    if m: return {(m.group(1), int(m.group(2)))}
    m = re.fullmatch(r"([vas])\[(\d+):(\d+)\]", tok)
    if m: return {(m.group(1), i) for i in range(int(m.group(2)), int(m.group(3)) + 1)}
    if tok == "vcc": return {("s", 106), ("s", 107)}
    if tok == "m0": return {("s", 124)}
    if tok == "exec": return {("s", 126), ("s", 127)}
    return set()

def split_ops(s):
    out = []; depth = 0; cur = ""
    for ch in s:
        if ch == '[': depth += 1
        if ch == ']': depth -= 1
        if ch == ',' and depth == 0:
            out.append(cur.strip()); cur = ""
        else: cur += ch
    if cur.strip(): out.append(cur.strip())
    return out

class Ins:
    __slots__ = ("text", "mn", "dst", "src", "kind", "srcC", "passes", "storedata")
    def __init__(self, text):
        self.text = text
        t = text.split(";")[0].strip()
        parts = t.split(None, 1)
        self.mn = parts[0]
        ops = split_ops(parts[1]) if len(parts) > 1 else []
        ops2 = []
        for o in ops:
            ops2.append(o.split()[0] if o else o)
        ops = ops2
        mn = self.mn
        self.dst = set(); self.src = set(); self.srcC = set(); self.passes = 0; self.storedata = set()
        R = parse_regs
        if mn.startswith("v_mfma"):
            self.kind = "mfma"
            self.dst = R(ops[0]); self.src = R(ops[1]) | R(ops[2]) | R(ops[3]); self.srcC = R(ops[3])
            self.passes = 4 if "16x16x32" in mn else 8
        elif mn.startswith("buffer_load") or mn.startswith("global_load"):
            self.kind = "vmem"
            if " lds" in t:
                self.src = set().union(*[R(o) for o in ops]) | {("s", 124)}
            else:
                self.dst = R(ops[0]); self.src = set().union(*[R(o) for o in ops[1:]])
                if "d16" in mn: self.src |= self.dst
        elif mn.startswith("buffer_store") or mn.startswith("global_store") or mn.startswith("buffer_atomic") or mn.startswith("global_atomic"):
            self.kind = "vmem"
            self.src = set().union(*[R(o) for o in ops])
            if mn.endswith("x4") or mn.endswith("x3"):
                self.storedata = R(ops[0]) if mn.startswith("buffer") else R(ops[1])
            if "sc0" in t and "atomic" in mn:
                self.dst = R(ops[0])
        elif mn.startswith("ds_read") or mn.startswith("ds_bpermute"):
            self.kind = "ds"; self.dst = R(ops[0]); self.src = set().union(*[R(o) for o in ops[1:]])
        elif mn.startswith("ds_write"):
            self.kind = "ds"; self.src = set().union(*[R(o) for o in ops])
        elif mn.startswith("v_"):
            self.kind = "valu"
            if mn.startswith("v_cmp"):
                self.dst = R(ops[0]); self.src = set().union(*[R(o) for o in ops[1:]])
            elif mn.startswith("v_permlane"):
                self.dst = R(ops[0]) | R(ops[1]); self.src = R(ops[0]) | R(ops[1])
            elif mn.startswith("v_readfirstlane") or mn.startswith("v_readlane"):
                self.dst = R(ops[0]); self.src = set().union(*[R(o) for o in ops[1:]])
            elif mn in ("v_add_co_u32", "v_addc_co_u32", "v_sub_co_u32"):
                self.dst = R(ops[0]) | R(ops[1]); self.src = set().union(*[R(o) for o in ops[2:]])
            else:
                self.dst = R(ops[0]); self.src = set().union(*[R(o) for o in ops[1:]]) if len(ops) > 1 else set()
                if mn.startswith("v_fmac") or mn.startswith("v_dot2c"): self.src |= self.dst
        elif mn.startswith("s_"):
            self.kind = "salu"
            if mn.startswith("s_cmp") or mn.startswith("s_waitcnt") or mn.startswith("s_nop") or mn.startswith("s_barrier") or mn.startswith("s_branch") or mn.startswith("s_cbranch") or mn.startswith("s_endpgm") or mn.startswith("s_setprio") or mn.startswith("s_sleep"):
                self.src = set().union(*[R(o) for o in ops]) if ops else set()
            else:
                self.dst = R(ops[0]); self.src = set().union(*[R(o) for o in ops[1:]]) if len(ops) > 1 else set()
        else:
            self.kind = "other"

def states_of(ins):
    if ins.mn == "s_nop":
        return int(ins.text.split()[1].split(";")[0]) + 1
    return 1

def required(prod, cons):
    req = 0
    pv = {r for r in prod.dst if r[0] in "va"}
    ps = {r for r in prod.dst if r[0] == "s"}
    if prod.kind == "valu":
        if cons.kind == "mfma" and pv & cons.src: req = max(req, 2)
        if cons.mn.startswith("v_permlane") and pv & cons.src: req = max(req, 2)
        if prod.mn in TRANS and cons.kind == "valu" and (pv & (cons.src | cons.dst)): req = max(req, 1)
        if prod.mn.startswith("v_dot2") and (pv & (cons.src | cons.dst)) and cons.kind != "salu":
            if not (cons.mn == prod.mn):
                req = max(req, 3)
            else:
                req = max(req, 0)
        if ps:
            if cons.kind == "valu" and ps & cons.src: req = max(req, 2)
            if cons.kind == "vmem" and ps & cons.src: req = max(req, 5)
            if cons.kind == "salu" and ps & cons.src: req = max(req, 2)
            if cons.kind == "mfma" and (("s", 126) in ps): req = max(req, 4)
        if (cons.mn.startswith("v_readfirstlane") or cons.mn.startswith("v_readlane")) and pv & cons.src: req = max(req, 1)
    if prod.kind == "mfma":
        d = 8 if prod.passes == 4 else 12
        if cons.kind == "mfma":
            ab = cons.src - cons.srcC
            if pv & ab: req = max(req, d)
            if pv & cons.srcC and cons.srcC != pv: req = max(req, 6 if prod.passes == 4 else 10)
            if pv & cons.dst and cons.dst != pv: req = max(req, d)
        elif cons.kind in ("valu", "vmem", "ds"):
            if pv & (cons.src | cons.dst): req = max(req, d + 1)
        if cons.kind == "valu" and (prod.srcC & cons.dst): req = max(req, 3 if prod.passes == 4 else 7)
    if prod.kind == "salu":
        if ("s", 124) in prod.dst and cons.kind == "vmem" and ("s", 124) in cons.src: req = max(req, 1)
    if prod.kind == "vmem" and prod.storedata:
        if cons.dst & prod.storedata: req = max(req, 2)
    return req

class Asm:
    def __init__(self):
        self.items = []
        self.vm = []
        self.lg = []
    def raw(self, s): self.items.append(s)
    def label(self, name): self.items.append(name + ":")
    def __call__(self, text):
        for line in text.strip().split("\n"):
            line = line.strip()
            if not line: continue
            if line.endswith(":"): self.items.append(line)
            else: self.items.append(Ins(line))
    def vmi(self, text, tag):
        self(text); self.vm.append(tag)
    def vmwait(self, tag, extra=""):
        idx = -1
        for i, t in enumerate(self.vm):
            if t == tag: idx = i
        if idx < 0:
            if extra: self("s_waitcnt " + extra)
            return
        n = min(len(self.vm) - 1 - idx, 63)
        self("s_waitcnt vmcnt(%d) %s" % (n, extra))
        self.vm = self.vm[idx + 1:]
    def vmwait_all(self):
        self("s_waitcnt vmcnt(0)"); self.vm = []
    def lgi(self, text, tag):
        self(text); self.lg.append(tag)
    def lgwait(self, tag):
        idx = -1
        for i, t in enumerate(self.lg):
            if t == tag: idx = i
        if idx < 0: return
        n = len(self.lg) - 1 - idx
        assert n <= 15, n
        self("s_waitcnt lgkmcnt(%d)" % n)
        self.lg = self.lg[idx + 1:]
    def lgwait_all(self):
        self("s_waitcnt lgkmcnt(0)"); self.lg = []
    def finish(self):
        out = []
        hist = []
        for it in self.items:
            if isinstance(it, str):
                out.append(it)
                if it.endswith(":"):
                    pass
                continue
            need = 0
            dist = 0
            for p in reversed(hist):
                r = required(p, it)
                if r > dist: need = max(need, r - dist)
                dist += states_of(p)
                if dist > 24: break
            while need > 0:
                k = min(need, 16)
                nop = Ins("s_nop %d" % (k - 1))
                out.append(nop.text); hist.append(nop)
                need -= k
            out.append(it.text); hist.append(it)
            if len(hist) > 40: hist = hist[-40:]
        return "\n".join(out) + "\n"
```

```python
import sys
sys.path.insert(0, "dev")
from asmlib import Asm

MB = 1 << 20
WS_PHIQ0 = 0
WS_PHIQ1 = 4 * MB
WS_KVP = 5 * MB
WS_O = 8 * MB
WS_X1 = 11 * MB
WS_X2 = 14 * MB
WS_X3 = 17 * MB
WS_H = 20 * MB
WS_P2 = 40 * MB
WS_SIZE = 60 * MB
XBYTES = 2048 * 576 * 2
OOB = 0x7FFF0000
BUF = 36864
LDS_BYTES = 3 * BUF
LOG2E = 0x3FB8AA3B

S_A, S_B, S_WS, S_M, S_O = 8, 12, 16, 20, 24
P_IN = lambda i: 32 + 2 * i
P_OUT, P_DBG, P_WS = 50, 52, 54
S_LAYER = 92
S_WAVE = 3
S_WLDS = 56
S_T = 57
S_RB = 58
S_CG = 59
S_SP = 60
S_B0, S_B1, S_B2 = 61, 62, 63
S_X0 = 64


def srd(a, d, lo, hi, nbytes):
    a(f"s_mov_b32 s{d}, s{lo}")
    a(f"s_and_b32 s{d+1}, s{hi}, 0xffff")
    a(f"s_mov_b32 s{d+2}, {nbytes}")
    a(f"s_mov_b32 s{d+3}, 0x20000")


def srd_off(a, d, lo, hi, off, nbytes):
    a(f"s_add_u32 s{d}, s{lo}, {off}")
    a(f"s_addc_u32 s{d+1}, s{hi}, 0")
    a(f"s_and_b32 s{d+1}, s{d+1}, 0xffff")
    a(f"s_mov_b32 s{d+2}, {nbytes}")
    a(f"s_mov_b32 s{d+3}, 0x20000")


def srd_layer(a, d, opt0, opt1, nbytes):
    a(f"s_add_u32 s{S_X0}, s{opt0[0]}, {opt0[1]}")
    a(f"s_addc_u32 s{S_X0+1}, s{opt0[0]+1}, 0")
    a(f"s_add_u32 s{S_X0+2}, s{opt1[0]}, {opt1[1]}")
    a(f"s_addc_u32 s{S_X0+3}, s{opt1[0]+1}, 0")
    a(f"s_cmp_eq_u32 s{S_LAYER}, 0")
    a(f"s_cselect_b32 s{d}, s{S_X0}, s{S_X0+2}")
    a(f"s_cselect_b32 s{d+1}, s{S_X0+1}, s{S_X0+3}")
    a(f"s_and_b32 s{d+1}, s{d+1}, 0xffff")
    a(f"s_mov_b32 s{d+2}, {nbytes}")
    a(f"s_mov_b32 s{d+3}, 0x20000")


def prologue(a, nwg, endlabel):
    a(f"s_cmp_ge_u32 s2, {nwg}")
    a(f"s_cbranch_scc1 {endlabel}")
    a("s_load_dwordx16 s[32:47], s[0:1], 0")
    a("s_load_dwordx8 s[48:55], s[0:1], 64")
    a("v_and_b32 v1, 63, v0")
    a("v_lshrrev_b32 v2, 4, v1")
    a("v_and_b32 v3, 15, v1")
    a("v_lshrrev_b32 v4, 6, v0")
    a(f"v_readfirstlane_b32 s{S_WAVE}, v4")
    a("s_waitcnt lgkmcnt(0)")
    srd(a, S_WS, P_WS, P_WS + 1, WS_SIZE)


def lane_mask(a, sd, fn):
    m = 0
    for l in range(64):
        if fn(l): m |= 1 << l
    a(f"s_mov_b32 s{sd}, 0x{m & 0xffffffff:x}")
    a(f"s_mov_b32 s{sd+1}, 0x{m >> 32:x}")


def tr_bases(a, vT):
    a("v_lshrrev_b32 v5, 2, v3")
    a("v_and_b32 v6, 3, v3")
    a("v_lshl_add_u32 v5, v2, 3, v5")
    a("v_lshlrev_b32 v5, 6, v5")
    a("v_lshl_add_u32 v5, v6, 3, v5")
    a("v_and_b32 v6, 1, v2")
    a("v_lshlrev_b32 v6, 5, v6")
    a("v_xor_b32 v7, 32, v6")
    a(f"v_add_u32 v{vT}, v5, v6")
    a(f"v_add_u32 v{vT+1}, v5, v7")
    for b in (1, 2):
        a(f"v_add_u32 v{vT+2*b}, {b*BUF}, v{vT}")
        a(f"v_add_u32 v{vT+2*b+1}, {b*BUF}, v{vT+1}")


def dma_unit(a, vU):
    a("v_and_b32 v6, 3, v1")
    a("v_lshrrev_b32 v7, 5, v1")
    a("v_lshlrev_b32 v7, 1, v7")
    a(f"v_xor_b32 v{vU}, v6, v7")
    a("v_lshrrev_b32 v5, 2, v1")


class Chunk:
    def __init__(self, dma_v, sbase, lit, tiles, akey=0, first=True):
        self.dma_v = dma_v; self.sbase = sbase; self.lit = lit; self.tiles = tiles
        self.akey = akey; self.first = first


def dma_chunk(a, ch, buf, tag, ldw):
    for m in range(9):
        a(f"s_add_u32 m0, s{S_WLDS}, {buf*BUF + m*1024}")
        a(f"s_add_u32 s{S_T}, s{ch.sbase}, {m*16*ldw + ch.lit}")
        a.vmi(f"buffer_load_dwordx4 v{ch.dma_v}, s[{S_B}:{S_B+3}], s{S_T} offen lds", tag)


def gemm_chunks(a, chunks, ldw, vT, BR, areg, accreg, epi=None, pre_issued=2, a_ready=None):
    n = len(chunks)
    for c, ch in enumerate(chunks):
        buf = c % 3
        a.vmwait(("B", c))
        if a_ready is not None: a_ready(c)
        a("s_barrier")
        if c + 2 < n and c + 2 >= pre_issued:
            dma_chunk(a, chunks[c + 2], (c + 2) % 3, ("B", c + 2), ldw)

        def reads(ks):
            for t in range(len(ch.tiles)):
                r = BR + (ks % 3) * 8 + t * 4
                a.lgi(f"ds_read_b64_tr_b16 v[{r}:{r+1}], v{vT+2*buf+t} offset:{ks*2048}", (c, ks))
                a.lgi(f"ds_read_b64_tr_b16 v[{r+2}:{r+3}], v{vT+2*buf+t} offset:{ks*2048+256}", (c, ks))
        reads(0); reads(1)
        for ks in range(18):
            if ks + 2 < 18: reads(ks + 2)
            a.lgwait((c, ks))
            for t, tile in enumerate(ch.tiles):
                r = BR + (ks % 3) * 8 + t * 4
                for rt in range(2):
                    acc = accreg(rt, tile)
                    cin = "0" if (ks == 0 and ch.first) else acc
                    a(f"v_mfma_f32_16x16x32_bf16 {acc}, v[{r}:{r+3}], {areg(ch.akey, rt, ks)}, {cin}")
        if epi is not None: epi(c, ch)


def load_A(a, srdA, vOff, dst_fn, tag, koff=0):
    for rt in range(2):
        for ks in range(18):
            a.vmi(f"buffer_load_dwordx4 {dst_fn(rt, ks)}, v{vOff+rt}, s[{srdA}:{srdA+3}], 0 offen offset:{koff + 64*ks}", tag)


def reduce2(a, X, Y, T, op):
    a(f"v_permlane32_swap_b32 v{X}, v{Y}")
    a(f"{op} v{X}, v{X}, v{Y}")
    a(f"v_mov_b32 v{T}, v{X}")
    a(f"v_permlane16_swap_b32 v{X}, v{T}")
    a(f"{op} v{X}, v{X}, v{T}")
    a(f"v_mov_b32 v{Y}, v{X}")
    a(f"v_permlane32_swap_b32 v{X}, v{Y}")


def layernorm(a, A0, T0, sOnes):
    a(f"s_mov_b32 s{sOnes}, 0x3f803f80")
    S = [T0 + 0, T0 + 1]; Q = [T0 + 2, T0 + 3]
    for rt in range(2):
        a(f"v_mov_b32 v{S[rt]}, 0")
        a(f"v_mov_b32 v{Q[rt]}, 0")
    for d in range(72):
        for rt in range(2):
            x = A0 + rt * 72 + d
            a(f"v_dot2_f32_bf16 v{S[rt]}, v{x}, s{sOnes}, v{S[rt]}")
            a(f"v_dot2_f32_bf16 v{Q[rt]}, v{x}, v{x}, v{Q[rt]}")
    for rt in range(2):
        reduce2(a, S[rt], Q[rt], T0 + 4, "v_add_f32")
    R = [T0 + 6, T0 + 8]; N = [T0 + 10, T0 + 12]
    inv = 0x3AE38E39
    for rt in range(2):
        a(f"v_mul_f32 v{S[rt]}, 0x{inv:x}, v{S[rt]}")
        a(f"v_mul_f32 v{Q[rt]}, 0x{inv:x}, v{Q[rt]}")
        a(f"v_fma_f32 v{Q[rt]}, -v{S[rt]}, v{S[rt]}, v{Q[rt]}")
        a(f"v_max_f32 v{Q[rt]}, 0, v{Q[rt]}")
        a(f"v_add_f32 v{Q[rt]}, 0x3727c5ac, v{Q[rt]}")
        a(f"v_rsq_f32 v{R[rt]}, v{Q[rt]}")
        a(f"v_mul_f32 v{N[rt]}, v{S[rt]}, v{R[rt]}")
        a(f"v_sub_f32 v{N[rt]}, 0, v{N[rt]}")
        a(f"v_mov_b32 v{R[rt]+1}, v{R[rt]}")
        a(f"v_mov_b32 v{N[rt]+1}, v{N[rt]}")
    TT = T0 + 14
    for d in range(72):
        for rt in range(2):
            x = A0 + rt * 72 + d
            t = TT + 2 * ((d * 2 + rt) % 4)
            a(f"v_lshlrev_b32 v{t}, 16, v{x}")
            a(f"v_and_b32 v{t+1}, 0xffff0000, v{x}")
            a(f"v_pk_fma_f32 v[{t}:{t+1}], v[{t}:{t+1}], v[{R[rt]}:{R[rt]+1}], v[{N[rt]}:{N[rt]+1}]")
            a(f"v_cvt_pk_bf16_f32 v{x}, v{t}, v{t+1}")


def a_row_offsets(a, vOff, ld, sRow0):
    a(f"s_lshl_b32 s{S_X0}, s{S_WAVE}, 5")
    a(f"s_add_u32 s{S_X0}, s{S_X0}, s{sRow0}")
    a(f"v_add_u32 v5, s{S_X0}, v3")
    a(f"s_mov_b32 s{S_X0+1}, {ld}")
    a(f"v_mul_lo_u32 v5, v5, s{S_X0+1}")
    a(f"v_lshl_add_u32 v{vOff}, v2, 4, v5")
    a(f"v_add_u32 v{vOff+1}, {16*ld}, v{vOff}")


def softmax_unit(a, D0, D1, F0, F1, T, sG0, sL2E):
    a0, a1, a2, a3 = D0, D0 + 1, D0 + 2, D0 + 3
    b0, b1 = D1, D1 + 1
    bm0, bm1, MX, MN, TT = T, T + 1, T + 2, T + 3, T + 4
    EP = T + 6
    EN = T + 12
    SP, SN = T + 18, T + 19
    a(f"v_cndmask_b32 v{bm0}, v{a0}, v{b0}, s[{sG0}:{sG0+1}]")
    a(f"v_cndmask_b32 v{bm1}, v{a0}, v{b1}, s[{sG0}:{sG0+1}]")
    a(f"v_max3_f32 v{MX}, v{a0}, v{a1}, v{a2}")
    a(f"v_max3_f32 v{MN}, -v{a0}, -v{a1}, -v{a2}")
    a(f"v_max3_f32 v{MX}, v{MX}, v{a3}, v{bm0}")
    a(f"v_max3_f32 v{MN}, v{MN}, -v{a3}, -v{bm0}")
    a(f"v_max_f32 v{MX}, v{MX}, v{bm1}")
    a(f"v_max_f32 v{MN}, v{MN}, -v{bm1}") if False else a(f"v_max3_f32 v{MN}, v{MN}, -v{bm1}, -v{bm1}")
    reduce2(a, MX, MN, TT, "v_max_f32")
    a(f"v_mul_f32 v{MX}, s{sL2E}, v{MX}")
    a(f"v_mul_f32 v{MN}, s{sL2E}, v{MN}")
    src = [a0, a1, a2, a3, b0, b1]
    for k in range(6):
        a(f"v_fma_f32 v{EP+k}, v{src[k]}, s{sL2E}, -v{MX}")
        a(f"v_fma_f32 v{EN+k}, -v{src[k]}, s{sL2E}, -v{MN}")
    for k in range(6):
        a(f"v_exp_f32 v{EP+k}, v{EP+k}")
        a(f"v_exp_f32 v{EN+k}, v{EN+k}")
    for k in (4, 5):
        a(f"v_cndmask_b32 v{EP+k}, 0, v{EP+k}, s[{sG0}:{sG0+1}]")
        a(f"v_cndmask_b32 v{EN+k}, 0, v{EN+k}, s[{sG0}:{sG0+1}]")
    for (S, E) in ((SP, EP), (SN, EN)):
        a(f"v_add_f32 v{S}, v{E}, v{E+1}")
        a(f"v_add_f32 v{TT}, v{E+2}, v{E+3}")
        a(f"v_add_f32 v{S}, v{S}, v{TT}")
        a(f"v_add_f32 v{TT}, v{E+4}, v{E+5}")
        a(f"v_add_f32 v{S}, v{S}, v{TT}")
    reduce2(a, SP, SN, TT, "v_add_f32")
    a(f"v_rcp_f32 v{SP}, v{SP}")
    a(f"v_rcp_f32 v{SN}, v{SN}")
    for k in range(6):
        a(f"v_mul_f32 v{EP+k}, v{EP+k}, v{SP}")
        a(f"v_mul_f32 v{EN+k}, v{EN+k}, v{SN}")
    a(f"v_cvt_pk_bf16_f32 v{F0}, v{EP}, v{EP+1}")
    a(f"v_cvt_pk_bf16_f32 v{F0+1}, v{EP+2}, v{EP+3}")
    a(f"v_cvt_pk_bf16_f32 v{F0+2}, v{EN}, v{EN+1}")
    a(f"v_cvt_pk_bf16_f32 v{F0+3}, v{EN+2}, v{EN+3}")
    a(f"v_cvt_pk_bf16_f32 v{F1}, v{EP+4}, v{EP+5}")
    a(f"v_cvt_pk_bf16_f32 v{F1+1}, v{EN+4}, v{EN+5}")


def gen_k1():
    a = Asm()
    a.label("k1_body")
    prologue(a, 192, "k1_end")
    A0, ACC, BR = 16, 160, 232
    vT = 8
    vD, vD2, vD4 = 14, 15, 4
    vOff = 6
    a("s_mov_b32 s64, 0x15555556")
    a(f"s_mul_hi_u32 s{S_RB}, s2, s64")
    a(f"s_mul_i32 s64, s{S_RB}, 12")
    a(f"s_sub_u32 s{S_CG}, s2, s64")
    srd_layer(a, S_A, (P_IN(0), 0), (P_WS, WS_X2), XBYTES)
    srd(a, S_B, P_IN(1), P_IN(1) + 1, 576 * 1728 * 2)
    srd(a, S_M, P_IN(2), P_IN(2) + 1, 32 * 324 * 2)
    a(f"s_lshl_b32 s70, s{S_RB}, 7")
    a_row_offsets(a, vOff, 1152, 70)
    load_A(a, S_A, vOff, lambda rt, ks: f"v[{A0+(rt*18+ks)*4}:{A0+(rt*18+ks)*4+3}]", "A")
    a(f"s_mul_i32 s64, s{S_CG}, 144")
    a("s_add_u32 s65, s64, 1152")
    a("s_add_u32 s66, s64, 2304")
    a(f"s_mul_i32 s67, s{S_CG}, 288")
    a("s_sub_u32 s67, s67, 2304")
    a("s_add_u32 s68, s67, 144")
    a(f"s_cmp_ge_u32 s{S_CG}, 8")
    a("s_cselect_b32 s65, s67, s65")
    a("s_cselect_b32 s66, s68, s66")
    a(f"s_lshl_b32 s67, s{S_CG}, 2")
    a(f"s_lshl_b32 s68, s{S_CG}, 3")
    a("s_sub_u32 s68, s68, 64")
    a(f"s_cmp_ge_u32 s{S_CG}, 8")
    a("s_cselect_b32 s69, s68, s67")
    a(f"s_mul_i32 s{S_B0}, s{S_WAVE}, {144*3456}")
    a(f"s_add_u32 s{S_B1}, s{S_B0}, s65")
    a(f"s_add_u32 s{S_B2}, s{S_B0}, s66")
    a(f"s_mul_i32 s{S_WLDS}, s{S_WAVE}, 9216")
    dma_unit(a, vD4)
    a("v_mul_u32_u24 v5, 3456, v5")
    a(f"v_lshl_add_u32 v{vD}, v{vD4}, 4, v5")
    a("s_add_u32 s71, s65, 128")
    a("s_sub_u32 s72, s66, 16")
    a(f"v_lshl_add_u32 v{vD2}, v{vD4}, 4, s72")
    a(f"v_mov_b32 v6, s71")
    a(f"v_cmp_eq_u32 vcc, 0, v{vD4}")
    a(f"v_cndmask_b32 v{vD2}, v{vD2}, v6, vcc")
    a(f"v_add_u32 v{vD2}, v{vD2}, v5")
    a(f"v_cmp_gt_u32 vcc, 2, v{vD4}")
    a(f"v_mov_b32 v6, {OOB}")
    a(f"v_cndmask_b32 v{vD4}, v6, v{vD}, vcc")
    chunks = [Chunk(vD, S_B1, 0, [0, 1]), Chunk(vD, S_B1, 64, [2, 3]), Chunk(vD2, S_B0, 0, [4, 5]),
              Chunk(vD, S_B2, 48, [6, 7]), Chunk(vD4, S_B2, 112, [8])]
    dma_chunk(a, chunks[0], 0, ("B", 0), 3456)
    dma_chunk(a, chunks[1], 1, ("B", 1), 3456)
    tr_bases(a, vT)
    a("v_mul_u32_u24 v5, 144, v2")
    a("v_lshl_add_u32 v5, v3, 1, v5")
    a(f"s_mul_i32 s70, s69, 648")
    a("s_add_u32 s71, s70, 2304")
    maskreg = {}
    nxt = [ACC]
    def get_mask(lo, hi, ft):
        key = (lo, hi, ft)
        if key not in maskreg:
            r = nxt[0]; nxt[0] += 1
            lane_mask(a, 72, lambda l: lo <= (l >> 4) <= hi and (ft == 0 or (l & 15) < 2))
            a(f"v_mov_b32 v{r}, {OOB}")
            a(f"v_cndmask_b32 v{r}, v{r}, v5, s[72:73]")
            maskreg[key] = r
        return maskreg[key]
    for hp in range(8):
        for ft in range(2):
            for j in range(8):
                cj = j if j < 4 else j + 12
                gs = [g for g in range(4) if 0 <= 4 * g + cj - 2 * hp < 18]
                dst = f"a{(hp*2+ft)*8 + j}"
                op = "buffer_load_ushort"
                if not gs:
                    r = get_mask(5, 5, 0)
                else:
                    r = get_mask(gs[0], gs[-1], ft)
                const = 36 * cj + 32 * ft + 576 * (hp % 4)
                so = 70 if hp < 4 else 71
                a.vmi(f"{op} {dst}, v{r}, s[{S_M}:{S_M+3}], s{so} offen offset:{const}", "W")
    a.vmwait("A")
    layernorm(a, A0, ACC + 32, 74)
    areg = lambda akey, rt, ks: f"v[{A0+(rt*18+ks)*4}:{A0+(rt*18+ks)*4+3}]"
    accreg = lambda rt, t: f"v[{ACC+(rt*9+t)*4}:{ACC+(rt*9+t)*4+3}]"
    gemm_chunks(a, chunks, 3456, vT, BR, areg, accreg)
    a.vmwait("W")
    a("s_barrier")
    P = 16
    for rt in range(2):
        for t in range(9):
            c = ACC + (rt * 9 + t) * 4
            p = P + rt * 18 + 2 * t
            a(f"v_cvt_pk_bf16_f32 v{p}, v{c}, v{c+1}")
            a(f"v_cvt_pk_bf16_f32 v{p+1}, v{c+2}, v{c+3}")
    sG0, sL2E = 74, 76
    lane_mask(a, sG0, lambda l: (l >> 4) == 0)
    a(f"s_mov_b32 s{sL2E}, 0x{LOG2E:x}")
    D0, D1, F0, F1, T = 56, 60, 64, 68, 72
    WX = 96
    for k in range(64):
        a(f"v_accvgpr_read_b32 v{52 + 2*(k%2)}, a{2*k}")
        a(f"v_accvgpr_read_b32 v{53 + 2*(k%2)}, a{2*k+1}")
        a(f"v_lshl_or_b32 v{WX+k}, v{53 + 2*(k%2)}, 16, v{52 + 2*(k%2)}")
    a(f"s_cmp_ge_u32 s{S_CG}, 8")
    a("s_cbranch_scc0 k1_kv")
    a(f"s_lshl_b32 s77, s{S_RB}, 3")
    a(f"s_lshl_b32 s78, s{S_WAVE}, 1")
    a("s_add_u32 s77, s77, s78")
    a("s_lshl_b32 s77, s77, 5")
    a("s_add_u32 s77, s77, s69")
    a("v_lshlrev_b32 v52, 4, v1")
    a("v_lshlrev_b32 v53, 3, v3")
    a(f"v_mov_b32 v54, {OOB}")
    a(f"v_cndmask_b32 v53, v54, v53, s[{sG0}:{sG0+1}]")
    for rt in range(2):
        for hp in range(8):
            p = P + rt * 18 + 2 * hp
            a(f"v_mfma_f32_16x16x32_bf16 v[{D0}:{D0+3}], v[{WX+hp*8}:{WX+hp*8+3}], v[{p}:{p+3}], 0")
            a(f"v_mfma_f32_16x16x32_bf16 v[{D1}:{D1+3}], v[{WX+hp*8+4}:{WX+hp*8+7}], v[{p}:{p+3}], 0")
            softmax_unit(a, D0, D1, F0, F1, T, sG0, sL2E)
            u = rt * 32 + hp
            a(f"s_add_u32 s78, s77, {u}")
            a(f"s_lshl_b32 s79, s78, 10")
            a(f"s_lshl_b32 s80, s78, 7")
            a(f"s_add_u32 s80, s80, {WS_PHIQ1}")
            a(f"buffer_store_dwordx4 v[{F0}:{F0+3}], v52, s[{S_WS}:{S_WS+3}], s79 offen")
            a(f"buffer_store_dwordx2 v[{F1}:{F1+1}], v53, s[{S_WS}:{S_WS+3}], s80 offen")
    a("s_branch k1_end")
    a.label("k1_kv")
    a("s_nop 7")
    PS, VS, VZB = 416, 288, 53248
    a(f"s_lshl_b32 s77, s{S_WAVE}, 5")
    a("v_add_u32 v52, s77, v3")
    a(f"v_mul_u32_u24 v53, {VS}, v52")
    a(f"v_add_u32 v53, {VZB}, v53")
    a(f"v_mul_u32_u24 v52, {PS}, v52")
    a("v_lshl_add_u32 v52, v2, 3, v52")
    a("v_lshl_add_u32 v54, v2, 6, v53")
    a("v_mov_b32 v55, 0x3f80")
    for rt in range(2):
        a.lgi(f"ds_write_b32 v54, v55 offset:{rt*16*VS + 36}", "w")
    a("v_lshlrev_b32 v54, 3, v2")
    for ct in range(4, 9):
        for pp in range(2):
            vals = []
            for g in range(4):
                col = 16 * ct + 4 * g + 2 * pp - 72
                vals.append(126 if col < 0 else 32 * (col // 18) + col % 18)
            const = vals[0] | (vals[1] << 8) | (vals[2] << 16) | (vals[3] << 24)
            a(f"s_mov_b32 s78, 0x{const:x}")
            a(f"v_bfe_u32 v55, s78, v54, 8")
            a(f"v_lshl_add_u32 v55, v55, 1, v53")
            for rt in range(2):
                a.lgi(f"ds_write_b32 v55, v{P + rt*18 + 2*ct + pp} offset:{rt*16*VS}", "w")
    for rt in range(2):
        for hp in range(4):
            p = P + rt * 18 + 2 * hp
            a(f"v_mfma_f32_16x16x32_bf16 v[{D0}:{D0+3}], v[{WX+hp*8}:{WX+hp*8+3}], v[{p}:{p+3}], 0")
            a(f"v_mfma_f32_16x16x32_bf16 v[{D1}:{D1+3}], v[{WX+hp*8+4}:{WX+hp*8+7}], v[{p}:{p+3}], 0")
            softmax_unit(a, D0, D1, F0, F1, T, sG0, sL2E)
            o = rt * 16 * PS + hp * 96
            a(f"ds_write_b64 v52, v[{F0}:{F0+1}] offset:{o}")
            a(f"ds_write_b64 v52, v[{F0+2}:{F0+3}] offset:{o+32}")
            a(f"ds_write_b64 v52, v[{F1}:{F1+1}] offset:{o+64}")
            a.lgwait_all()
    a.lgwait_all()
    a("s_barrier")
    a("v_lshrrev_b32 v52, 2, v3")
    a("v_and_b32 v53, 3, v3")
    a("v_lshl_add_u32 v52, v2, 3, v52")
    a(f"v_mul_u32_u24 v54, {PS}, v52")
    a(f"v_mul_u32_u24 v55, {VS}, v52")
    a("v_lshl_add_u32 v54, v53, 3, v54")
    a("v_lshl_add_u32 v55, v53, 3, v55")
    a(f"s_mul_i32 s77, s{S_WAVE}, 96")
    a(f"s_lshl_b32 s78, s{S_WAVE}, 6")
    a(f"s_add_u32 s78, s78, {VZB}")
    a("v_add_u32 v54, s77, v54")
    a("v_add_u32 v55, s78, v55")
    FA, FB, DK = 160, 208, 64
    for ks in range(4):
        for it in range(3):
            r = FA + (ks * 3 + it) * 4
            a(f"ds_read_b64_tr_b16 v[{r}:{r+1}], v54 offset:{ks*32*PS + it*32}")
            a(f"ds_read_b64_tr_b16 v[{r+2}:{r+3}], v54 offset:{ks*32*PS + 4*PS + it*32}")
        for dt in range(2):
            r = FB + (ks * 2 + dt) * 4
            a(f"ds_read_b64_tr_b16 v[{r}:{r+1}], v55 offset:{ks*32*VS + dt*32}")
            a(f"ds_read_b64_tr_b16 v[{r+2}:{r+3}], v55 offset:{ks*32*VS + 4*VS + dt*32}")
        a("s_waitcnt lgkmcnt(0)")
        for it in range(3):
            for dt in range(2):
                d = DK + (it * 2 + dt) * 4
                ra = FA + (ks * 3 + it) * 4; rb_ = FB + (ks * 2 + dt) * 4
                cin = "0" if ks == 0 else f"v[{d}:{d+3}]"
                a(f"v_mfma_f32_16x16x32_bf16 v[{d}:{d+3}], v[{ra}:{ra+3}], v[{rb_}:{rb_+3}], {cin}")
    a(f"s_lshl_b32 s77, s{S_RB}, 5")
    a("s_add_u32 s77, s77, s69")
    a(f"s_add_u32 s77, s77, s{S_WAVE}")
    a("s_mul_i32 s77, s77, 6144")
    a(f"s_add_u32 s77, s77, {WS_KVP}")
    a("v_lshlrev_b32 v52, 4, v1")
    for tl in range(6):
        d = DK + tl * 4
        if tl < 4:
            a(f"buffer_store_dwordx4 v[{d}:{d+3}], v52, s[{S_WS}:{S_WS+3}], s77 offen offset:{tl*1024}")
        else:
            if tl == 4: a("s_add_u32 s77, s77, 4096")
            a(f"buffer_store_dwordx4 v[{d}:{d+3}], v52, s[{S_WS}:{S_WS+3}], s77 offen offset:{(tl-4)*1024}")
    a.label("k1_end")
    a("s_endpgm")
    return a.finish()


def gen_ko():
    a = Asm()
    a.label("ko_body")
    prologue(a, 128, "ko_end")
    a(f"s_lshr_b32 s{S_RB}, s2, 3")
    a("s_and_b32 s64, s2, 7")
    a("s_lshl_b32 s64, s64, 2")
    a(f"s_add_u32 s69, s64, s{S_WAVE}")
    a("v_lshlrev_b32 v52, 4, v1")
    a("s_mul_i32 s70, s69, 6144")
    a(f"s_add_u32 s70, s70, {WS_KVP}")
    S = 16
    L = 64
    sG0 = 74
    lane_mask(a, sG0, lambda l: (l >> 4) == 0)
    def issue(t):
        b = L + (t % 2) * 64
        for p in range(16):
            a(f"s_add_u32 s71, s70, {p*32*6144 + t*1024}")
            a.vmi(f"buffer_load_dwordx4 v[{b+4*p}:{b+4*p+3}], v52, s[{S_WS}:{S_WS+3}], s71 offen", ("P", t))
    issue(0)
    for t in range(6):
        if t + 1 < 6: issue(t + 1)
        a.vmwait(("P", t))
        b = L + (t % 2) * 64
        for r in range(4):
            a(f"v_add_f32 v{S+4*t+r}, v{b+r}, v{b+4+r}")
        for p in range(2, 16):
            for r in range(4):
                a(f"v_add_f32 v{S+4*t+r}, v{S+4*t+r}, v{b+4*p+r}")
    F = 40
    F = 200
    for dt in range(2):
        f0 = F + dt * 4; f1 = F + 8 + dt * 4
        s0 = S + (0 * 2 + dt) * 4; s1 = S + (1 * 2 + dt) * 4; s2_ = S + (2 * 2 + dt) * 4
        a(f"v_cvt_pk_bf16_f32 v{f0}, v{s0}, v{s0+1}")
        a(f"v_cvt_pk_bf16_f32 v{f0+1}, v{s0+2}, v{s0+3}")
        a(f"v_cvt_pk_bf16_f32 v{f0+2}, v{s1}, v{s1+1}")
        a(f"v_cvt_pk_bf16_f32 v{f0+3}, v{s1+2}, v{s1+3}")
        a(f"v_cvt_pk_bf16_f32 v{f1}, v{s2_}, v{s2_+1}")
        a(f"v_cvt_pk_bf16_f32 v{f1+1}, v{s2_+2}, v{s2_+3}")
        a(f"v_mov_b32 v{f1+2}, 0")
        a(f"v_mov_b32 v{f1+3}, 0")
    a("v_lshlrev_b32 v53, 3, v3")
    a(f"v_mov_b32 v54, {OOB}")
    a(f"v_cndmask_b32 v53, v54, v53, s[{sG0}:{sG0+1}]")
    a(f"s_lshl_b32 s72, s{S_RB}, 8")
    a("s_add_u32 s72, s72, s69")
    for k in range(8):
        q = 64 + 8 * k
        a(f"s_add_u32 s73, s72, {k*32}")
        a("s_lshl_b32 s76, s73, 10")
        a("s_lshl_b32 s77, s73, 7")
        a(f"s_add_u32 s77, s77, {WS_PHIQ1}")
        a.vmi(f"buffer_load_dwordx4 v[{q}:{q+3}], v52, s[{S_WS}:{S_WS+3}], s76 offen", ("Q", k))
        a.vmi(f"buffer_load_dwordx2 v[{q+4}:{q+5}], v53, s[{S_WS}:{S_WS+3}], s77 offen", ("Q", k))
        a(f"v_mov_b32 v{q+6}, 0")
        a(f"v_mov_b32 v{q+7}, 0")
    a(f"s_lshl_b32 s78, s{S_RB}, 7")
    a("v_add_u32 v55, s78, v3")
    a("v_mul_u32_u24 v55, 1152, v55")
    a("v_lshl_add_u32 v55, v2, 3, v55")
    a("s_mul_i32 s78, s69, 36")
    a(f"s_add_u32 s78, s78, {WS_O}")
    a("v_add_u32 v56, 32, v55")
    a(f"v_cndmask_b32 v56, v54, v56, s[{sG0}:{sG0+1}]")
    D0, D1, T = 140, 144, 148
    for k in range(8):
        q = 64 + 8 * k
        a.vmwait(("Q", k))
        a(f"v_mfma_f32_16x16x32_bf16 v[{D0}:{D0+3}], v[{F}:{F+3}], v[{q}:{q+3}], 0")
        a(f"v_mfma_f32_16x16x32_bf16 v[{D1}:{D1+3}], v[{F+4}:{F+7}], v[{q}:{q+3}], 0")
        a(f"v_mfma_f32_16x16x32_bf16 v[{D0}:{D0+3}], v[{F+8}:{F+11}], v[{q+4}:{q+7}], v[{D0}:{D0+3}]")
        a(f"v_mfma_f32_16x16x32_bf16 v[{D1}:{D1+3}], v[{F+12}:{F+15}], v[{q+4}:{q+7}], v[{D1}:{D1+3}]")
        a(f"v_cndmask_b32 v{T}, 0, v{D1+2}, s[{sG0}:{sG0+1}]")
        a(f"v_mov_b32 v{T+1}, 0")
        reduce2(a, T, T + 1, T + 2, "v_add_f32")
        a(f"v_add_f32 v{T}, 0x358637bd, v{T}")
        a(f"v_rcp_f32 v{T}, v{T}")
        for r in range(4):
            a(f"v_mul_f32 v{D0+r}, v{D0+r}, v{T}")
        a(f"v_mul_f32 v{D1}, v{D1}, v{T}")
        a(f"v_mul_f32 v{D1+1}, v{D1+1}, v{T}")
        a(f"v_cvt_pk_bf16_f32 v{T+4}, v{D0}, v{D0+1}")
        a(f"v_cvt_pk_bf16_f32 v{T+5}, v{D0+2}, v{D0+3}")
        a(f"v_cvt_pk_bf16_f32 v{T+6}, v{D1}, v{D1+1}")
        a(f"s_add_u32 s79, s78, {k*16*1152}")
        a(f"buffer_store_dword v{T+4}, v55, s[{S_WS}:{S_WS+3}], s79 offen")
        a(f"buffer_store_dword v{T+5}, v55, s[{S_WS}:{S_WS+3}], s79 offen offset:4")
        a(f"buffer_store_dword v{T+6}, v56, s[{S_WS}:{S_WS+3}], s79 offen")
        a("s_nop 1")
    a.label("ko_end")
    a("s_endpgm")
    return a.finish()


def std_chunks(vD, vD4, sbase, akey=0, first=True, lit0=0):
    ch = [Chunk(vD, sbase, lit0 + 64 * c, [2 * c, 2 * c + 1], akey, first) for c in range(4)]
    ch.append(Chunk(vD4, sbase, lit0 + 256, [8], akey, first))
    return ch


def dma_std_voffs(a, vD, vD4, ldw):
    dma_unit(a, vD4)
    a(f"s_mov_b32 s64, {ldw}")
    a("v_mul_lo_u32 v5, v5, s64")
    a(f"v_lshl_add_u32 v{vD}, v{vD4}, 4, v5")
    if vD4 is not None:
        a(f"v_cmp_gt_u32 vcc, 2, v{vD4}")
        a(f"v_mov_b32 v6, {OOB}")
        a(f"v_cndmask_b32 v{vD4}, v6, v{vD}, vcc")


def gen_k2():
    a = Asm()
    a.label("k2_body")
    prologue(a, 64, "k2_end")
    A0, ACC, BR = 16, 160, 232
    vT = 8; vD, vD4 = 14, 15; vOff = 6
    a(f"s_lshr_b32 s{S_RB}, s2, 2")
    a(f"s_and_b32 s{S_CG}, s2, 3")
    srd_off(a, S_A, P_WS, P_WS + 1, WS_O, XBYTES)
    srd(a, S_B, P_IN(3), P_IN(3) + 1, 576 * 576 * 2)
    srd_layer(a, S_M, (P_IN(0), 0), (P_WS, WS_X2), XBYTES)
    srd_layer(a, S_O, (P_WS, WS_X1), (P_WS, WS_X3), XBYTES)
    a(f"s_lshl_b32 s70, s{S_RB}, 7")
    a_row_offsets(a, vOff, 1152, 70)
    load_A(a, S_A, vOff, lambda rt, ks: f"v[{A0+(rt*18+ks)*4}:{A0+(rt*18+ks)*4+3}]", "A")
    a(f"s_mul_i32 s{S_B0}, s{S_WAVE}, {144*1152}")
    a(f"s_mul_i32 s65, s{S_CG}, 288")
    a(f"s_add_u32 s{S_B0}, s{S_B0}, s65")
    a(f"s_mul_i32 s{S_WLDS}, s{S_WAVE}, 9216")
    dma_std_voffs(a, vD, vD4, 1152)
    chunks = std_chunks(vD, vD4, S_B0)
    dma_chunk(a, chunks[0], 0, ("B", 0), 1152)
    dma_chunk(a, chunks[1], 1, ("B", 1), 1152)
    tr_bases(a, vT)
    areg = lambda akey, rt, ks: f"v[{A0+(rt*18+ks)*4}:{A0+(rt*18+ks)*4+3}]"
    accreg = lambda rt, t: f"v[{ACC+(rt*9+t)*4}:{ACC+(rt*9+t)*4+3}]"
    a.vmwait("A")
    gemm_chunks(a, chunks, 1152, vT, BR, areg, accreg)
    a(f"s_lshl_b32 s70, s{S_RB}, 7")
    a(f"s_lshl_b32 s71, s{S_WAVE}, 5")
    a("s_add_u32 s70, s70, s71")
    a("v_add_u32 v5, s70, v3")
    a("v_mul_u32_u24 v5, 1152, v5")
    a("v_lshl_add_u32 v5, v2, 3, v5")
    a("v_add_u32 v5, s65, v5")
    X = 16
    for rt in range(2):
        for t in range(9):
            x = X + (rt * 9 + t) * 2
            a(f"s_mov_b32 s71, {rt*16*1152}")
            a.vmi(f"buffer_load_dwordx2 v[{x}:{x+1}], v5, s[{S_M}:{S_M+3}], s71 offen offset:{32*t}", ("X", rt, t))
    T = 60
    for rt in range(2):
        for t in range(9):
            x = X + (rt * 9 + t) * 2
            c = ACC + (rt * 9 + t) * 4
            a.vmwait(("X", rt, t))
            a(f"v_lshlrev_b32 v{T}, 16, v{x}")
            a(f"v_and_b32 v{T+1}, 0xffff0000, v{x}")
            a(f"v_lshlrev_b32 v{T+2}, 16, v{x+1}")
            a(f"v_and_b32 v{T+3}, 0xffff0000, v{x+1}")
            for r in range(4):
                a(f"v_add_f32 v{T+r}, v{T+r}, v{c+r}")
            a(f"v_cvt_pk_bf16_f32 v{x}, v{T}, v{T+1}")
            a(f"v_cvt_pk_bf16_f32 v{x+1}, v{T+2}, v{T+3}")
            a(f"s_mov_b32 s71, {rt*16*1152}")
            a(f"buffer_store_dwordx2 v[{x}:{x+1}], v5, s[{S_O}:{S_O+3}], s71 offen offset:{32*t}")
    a.label("k2_end")
    a("s_endpgm")
    return a.finish()


def gen_k3():
    a = Asm()
    a.label("k3_body")
    prologue(a, 256, "k3_end")
    A0, ACC, BR, BIAS, T = 16, 160, 176, 200, 236
    vT = 8; vD = 14; vOff = 6
    a(f"s_lshr_b32 s{S_RB}, s2, 4")
    a("s_and_b32 s64, s2, 7")
    a("s_lshl_b32 s64, s64, 1")
    a("s_lshr_b32 s65, s2, 3")
    a("s_and_b32 s65, s65, 1")
    a(f"s_add_u32 s{S_CG}, s64, s65")
    srd_layer(a, S_A, (P_WS, WS_X1), (P_WS, WS_X3), XBYTES)
    srd(a, S_B, P_IN(5), P_IN(5) + 1, 576 * 4608 * 2)
    srd(a, S_M, P_IN(6), P_IN(6) + 1, 4608 * 2)
    srd_off(a, S_O, P_WS, P_WS + 1, WS_H, 2048 * 4608 * 2)
    a(f"s_lshl_b32 s70, s{S_RB}, 7")
    a_row_offsets(a, vOff, 1152, 70)
    load_A(a, S_A, vOff, lambda rt, ks: f"v[{A0+(rt*18+ks)*4}:{A0+(rt*18+ks)*4+3}]", "A")
    a(f"s_mul_i32 s{S_B0}, s{S_WAVE}, {144*9216}")
    a(f"s_mul_i32 s65, s{S_CG}, 576")
    a(f"s_add_u32 s{S_B0}, s{S_B0}, s65")
    a(f"s_mul_i32 s{S_WLDS}, s{S_WAVE}, 9216")
    dma_unit(a, 15)
    a("s_mov_b32 s64, 9216")
    a("v_mul_lo_u32 v5, v5, s64")
    a(f"v_lshl_add_u32 v{vD}, v15, 4, v5")
    chunks = [Chunk(vD, S_B0, 64 * c, [0, 1]) for c in range(9)]
    dma_chunk(a, chunks[0], 0, ("B", 0), 9216)
    dma_chunk(a, chunks[1], 1, ("B", 1), 9216)
    tr_bases(a, vT)
    a("v_lshlrev_b32 v5, 3, v2")
    a("v_add_u32 v5, s65, v5")
    for t in range(18):
        a.vmi(f"buffer_load_dwordx2 v[{BIAS+2*t}:{BIAS+2*t+1}], v5, s[{S_M}:{S_M+3}], 0 offen offset:{32*t}", "bias")
    a(f"s_lshl_b32 s70, s{S_RB}, 7")
    a(f"s_lshl_b32 s71, s{S_WAVE}, 5")
    a("s_add_u32 s70, s70, s71")
    a("v_add_u32 v4, s70, v3")
    a("v_mul_lo_u32 v4, v4, s64")
    a("v_add_u32 v4, v4, v5")
    a(f"s_mov_b32 s72, {16*9216}")
    a.vmwait("A")
    layernorm(a, A0, T - 4 - 0, 74) if False else layernorm(a, A0, ACC, 74)
    a.vmwait("bias")
    areg = lambda akey, rt, ks: f"v[{A0+(rt*18+ks)*4}:{A0+(rt*18+ks)*4+3}]"
    accreg = lambda rt, t: f"v[{ACC+(rt*2+t)*4}:{ACC+(rt*2+t)*4+3}]"

    def epi(c, ch):
        for t in range(2):
            b = BIAS + 2 * (2 * c + t)
            a(f"v_lshlrev_b32 v{T}, 16, v{b}")
            a(f"v_and_b32 v{T+1}, 0xffff0000, v{b}")
            a(f"v_lshlrev_b32 v{T+2}, 16, v{b+1}")
            a(f"v_and_b32 v{T+3}, 0xffff0000, v{b+1}")
            for rt in range(2):
                cc = ACC + (rt * 2 + t) * 4
                h = T + 4 + rt * 6
                for r in range(4):
                    a(f"v_add_f32 v{h+r}, v{cc+r}, v{T+r}")
                for r in range(4):
                    a(f"v_max_f32 v{h+r}, 0, v{h+r}")
                for r in range(4):
                    a(f"v_mul_f32 v{h+r}, v{h+r}, v{h+r}")
                a(f"v_cvt_pk_bf16_f32 v{h+4}, v{h}, v{h+1}")
                a(f"v_cvt_pk_bf16_f32 v{h+5}, v{h+2}, v{h+3}")
                so = "0" if rt == 0 else "s72"
                a.vmi(f"buffer_store_dwordx2 v[{h+4}:{h+5}], v4, s[{S_O}:{S_O+3}], {so} offen offset:{64*c+32*t}", ("st", c))
    gemm_chunks(a, chunks, 9216, vT, BR, areg, accreg, epi=epi)
    a.label("k3_end")
    a("s_endpgm")
    return a.finish()


def gen_k4():
    a = Asm()
    a.label("k4_body")
    prologue(a, 256, "k4_end")
    A0, ACC, BR = 16, 160, 232
    vT = 8; vD, vD4 = 14, 15; vOff = 160
    a("s_and_b32 s64, s2, 7")
    a(f"s_lshr_b32 s{S_SP}, s64, 1")
    a("s_and_b32 s64, s64, 1")
    a("s_lshl_b32 s64, s64, 3")
    a("s_lshr_b32 s65, s2, 5")
    a(f"s_add_u32 s{S_RB}, s64, s65")
    a("s_lshr_b32 s65, s2, 3")
    a(f"s_and_b32 s{S_CG}, s65, 3")
    srd_off(a, S_A, P_WS, P_WS + 1, WS_H, 2048 * 4608 * 2)
    srd(a, S_B, P_IN(7), P_IN(7) + 1, 4608 * 576 * 2)
    srd_off(a, S_O, P_WS, P_WS + 1, WS_P2, 4 * 2048 * 576 * 4)
    a(f"s_lshl_b32 s70, s{S_RB}, 7")
    a_row_offsets(a, vOff, 9216, 70)
    a(f"s_mul_i32 s66, s{S_SP}, 2304")
    a(f"v_add_u32 v{vOff}, s66, v{vOff}")
    a(f"v_add_u32 v{vOff+1}, s66, v{vOff+1}")
    load_A(a, S_A, vOff, lambda rt, ks: f"v[{A0+(rt*18+ks)*4}:{A0+(rt*18+ks)*4+3}]", "A0")
    a(f"s_mul_i32 s{S_B0}, s{S_WAVE}, {144*1152}")
    a(f"s_mul_i32 s65, s{S_SP}, {1152*1152}")
    a(f"s_add_u32 s{S_B0}, s{S_B0}, s65")
    a(f"s_mul_i32 s65, s{S_CG}, 288")
    a(f"s_add_u32 s{S_B0}, s{S_B0}, s65")
    a(f"s_mul_i32 s{S_WLDS}, s{S_WAVE}, 9216")
    dma_std_voffs(a, vD, vD4, 1152)
    chunks = std_chunks(vD, vD4, S_B0, 0, True, 0) + std_chunks(vD, vD4, S_B0, 1, False, 576 * 1152)
    dma_chunk(a, chunks[0], 0, ("B", 0), 1152)
    dma_chunk(a, chunks[1], 1, ("B", 1), 1152)
    load_A(a, S_A, vOff, lambda rt, ks: f"a[{(rt*18+ks)*4}:{(rt*18+ks)*4+3}]", "A1", koff=1152)
    tr_bases(a, vT)
    def areg(akey, rt, ks):
        p = "v" if akey == 0 else "a"
        b = A0 if akey == 0 else 0
        return f"{p}[{b+(rt*18+ks)*4}:{b+(rt*18+ks)*4+3}]"
    accreg = lambda rt, t: f"v[{ACC+(rt*9+t)*4}:{ACC+(rt*9+t)*4+3}]"
    def a_ready(c):
        if c == 0: a.vmwait("A0")
        if c == 5: a.vmwait("A1")
    gemm_chunks(a, chunks, 1152, vT, BR, areg, accreg, a_ready=a_ready)
    a(f"s_lshl_b32 s70, s{S_RB}, 7")
    a(f"s_lshl_b32 s71, s{S_WAVE}, 5")
    a("s_add_u32 s70, s70, s71")
    a("v_add_u32 v5, s70, v3")
    a("v_mul_u32_u24 v5, 2304, v5")
    a("v_lshl_add_u32 v5, v2, 4, v5")
    a(f"s_mul_i32 s70, s{S_SP}, 4718592")
    a(f"s_mul_i32 s71, s{S_CG}, 576")
    a("s_add_u32 s70, s70, s71")
    a(f"s_add_u32 s71, s70, {16*2304}")
    for rt in range(2):
        for t in range(9):
            c = ACC + (rt * 9 + t) * 4
            a(f"buffer_store_dwordx4 v[{c}:{c+3}], v5, s[{S_O}:{S_O+3}], s{70+rt} offen offset:{64*t}")
    a.label("k4_end")
    a("s_endpgm")
    return a.finish()


def gen_k4r():
    a = Asm()
    a.label("k4r_body")
    prologue(a, 1152, "k4r_end")
    srd_off(a, S_A, P_WS, P_WS + 1, WS_P2, 4 * 2048 * 576 * 4)
    srd_layer(a, S_M, (P_WS, WS_X1), (P_WS, WS_X3), XBYTES)
    srd(a, S_B, P_IN(8), P_IN(8) + 1, 576 * 2)
    srd_layer(a, S_O, (P_WS, WS_X2), (P_OUT, 0), XBYTES)
    a("s_lshl_b32 s64, s2, 8")
    a("v_add_u32 v4, s64, v0")
    a("v_lshlrev_b32 v5, 4, v4")
    a("v_lshlrev_b32 v6, 3, v4")
    for p in range(4):
        a(f"s_mov_b32 s65, {p*4718592}")
        a.vmi(f"buffer_load_dwordx4 v[{16+4*p}:{19+4*p}], v5, s[{S_A}:{S_A+3}], s65 offen", "p")
    a.vmi(f"buffer_load_dwordx2 v[32:33], v6, s[{S_M}:{S_M+3}], 0 offen", "p")
    a("s_mov_b32 s65, 0x1c71c72")
    a("v_mul_hi_u32 v7, v4, s65")
    a("v_mul_u32_u24 v7, 144, v7")
    a("v_sub_u32 v7, v4, v7")
    a("v_lshlrev_b32 v7, 3, v7")
    a.vmi(f"buffer_load_dwordx2 v[34:35], v7, s[{S_B}:{S_B+3}], 0 offen", "p")
    a.vmwait("p")
    for r in range(4):
        a(f"v_add_f32 v{16+r}, v{16+r}, v{20+r}")
        a(f"v_add_f32 v{24+r}, v{24+r}, v{28+r}")
    for r in range(4):
        a(f"v_add_f32 v{16+r}, v{16+r}, v{24+r}")
    for (src, t) in ((34, 40), (32, 44)):
        a(f"v_lshlrev_b32 v{t}, 16, v{src}")
        a(f"v_and_b32 v{t+1}, 0xffff0000, v{src}")
        a(f"v_lshlrev_b32 v{t+2}, 16, v{src+1}")
        a(f"v_and_b32 v{t+3}, 0xffff0000, v{src+1}")
    for r in range(4):
        a(f"v_add_f32 v{16+r}, v{16+r}, v{40+r}")
    for r in range(4):
        a(f"v_add_f32 v{16+r}, v{16+r}, v{44+r}")
    a("v_cvt_pk_bf16_f32 v20, v16, v17")
    a("v_cvt_pk_bf16_f32 v21, v18, v19")
    a(f"buffer_store_dwordx2 v[20:21], v6, s[{S_O}:{S_O+3}], 0 offen")
    a.label("k4r_end")
    a("s_endpgm")
    return a.finish()


KERNELS = [
    ("k1", gen_k1, 192, LDS_BYTES, 256, 128),
    ("ko", gen_ko, 128, 0, 256, 0),
    ("k2", gen_k2, 64, LDS_BYTES, 256, 0),
    ("k3", gen_k3, 256, LDS_BYTES, 256, 0),
    ("k4", gen_k4, 256, LDS_BYTES, 256, 144),
    ("k4r", gen_k4r, 1152, 0, 64, 0),
]

HEADER = """; Kernarg layout for this problem (96 bytes, ptrs only, base s[0:1]):
"""


def main(path):
    out = [HEADER.rstrip("\n")]
    for layer in range(2):
        for (name, _, nwg, lds, _, _) in KERNELS:
            out.append(f"; @launch kernel={name}_l{layer}_kernel grid=({nwg},1,1) block=(256,1,1) lds={lds}")
    out.append('.amdgcn_target "amdgcn-amd-amdhsa--gfx950"')
    out.append(".text")
    for (name, fn, nwg, lds, vg, ag) in KERNELS:
        for layer in range(2):
            k = f"{name}_l{layer}_kernel"
            out.append(f".globl {k}\n.p2align 8\n.type {k},@function\n{k}:")
            out.append(f"s_mov_b32 s{S_LAYER}, {layer}")
            out.append(f"s_branch {name}_body")
        out.append(".p2align 6")
        out.append(fn())
    out.append('.section .rodata,"a"')
    for (name, fn, nwg, lds, vg, ag) in KERNELS:
        for layer in range(2):
            k = f"{name}_l{layer}_kernel"
            out.append(f""".p2align 6
.amdhsa_kernel {k}
  .amdhsa_next_free_vgpr {vg + ag}
  .amdhsa_next_free_sgpr 102
  .amdhsa_accum_offset {vg}
  .amdhsa_group_segment_fixed_size 0
  .amdhsa_kernarg_size 96
  .amdhsa_user_sgpr_count 2
  .amdhsa_user_sgpr_kernarg_segment_ptr 1
  .amdhsa_system_sgpr_workgroup_id_x 1
.end_amdhsa_kernel""")
    open(path, "w").write("\n".join(out) + "\n")


if __name__ == "__main__":
    main(sys.argv[1] if len(sys.argv) > 1 else "interleave_layers__linear_kernel_hedgehog__dense_activation_squared_relu__prompt.s")
```
